```python
import torch

def _softmax(x, axis=-1):
    return torch.softmax(x, dim=axis)
def _gelu(x):
    return torch.nn.functional.gelu(x, approximate="tanh")
def _silu(x):
    return torch.nn.functional.silu(x)
def _sigmoid(x):
    return torch.sigmoid(x)
def _layernorm(x, axis=-1, eps=1e-5):
    m = x.mean(dim=axis, keepdim=True)
    v = x.var(dim=axis, keepdim=True, unbiased=False)
    return (x - m) / torch.sqrt(v + eps)
def _scatter_add(tgt, idx, src, axis=0):
    return tgt.clone().index_add_(axis, idx, src)
def _segment_sum(src, seg, n):
    out = torch.zeros((n,) + src.shape[1:], dtype=src.dtype)
    return out.index_add_(0, seg, src)
def _pad(x, pw):
    flat = tuple(v for pair in reversed(pw) for v in pair)
    return torch.nn.functional.pad(x, flat)

kernel_name = 'gated_mix__ssm_conv_h3__dense_activation_gelu__prompt'

def setup_inputs():

    _w = (lambda a: (lambda t: t.to(torch.bfloat16) if t.is_floating_point() else t)(torch.as_tensor(a)))
    def _A_setup():
        B, S, D = 1, 2048, 576
        ks = 4
        return {
            "q": _w((lambda *s: torch.randn(*s, dtype=torch.bfloat16) * 0.05)(B, S, D)),
            "k": _w((lambda *s: torch.randn(*s, dtype=torch.bfloat16) * 0.4)(B, S, D)),
            "v": _w((lambda *s: torch.randn(*s, dtype=torch.bfloat16) * 0.2)(B, S, D)),
            "shift_k": _w((lambda *s: torch.randn(*s, dtype=torch.bfloat16) * 0.4)(D, ks) * 0.5),
            "ssm_k": _w((lambda *s: torch.randn(*s, dtype=torch.bfloat16) * 0.4)(D, S) * (1.0 / S ** 0.5)),
            "ssm_D": _w((lambda *s: torch.randn(*s, dtype=torch.bfloat16) * 0.2)(D)),
        }
    _A_in = _A_setup()

    def _B_setup():
        B, S, D, F = 1, 2048, 576, 4608
        return {
            "x": _w((lambda *s: torch.randn(*s, dtype=torch.bfloat16) * 0.05)(B, S, D)),
            "w1": _w((lambda *s: torch.randn(*s, dtype=torch.bfloat16) * 3.2)(D, F) * (D ** -0.5)),
            "b1": _w((lambda *s: torch.randn(*s, dtype=torch.bfloat16) * 3.2)(F) * 0.01),
            "w2": _w((lambda *s: torch.randn(*s, dtype=torch.bfloat16) * 0.05)(F, D) * (F ** -0.5)),
            "b2": _w((lambda *s: torch.randn(*s, dtype=torch.bfloat16) * 0.1)(D) * 0.01),
        }
    _B_in = _B_setup()

    return {
        "A_q": _A_in["q"],
        "A_k": _A_in["k"],
        "A_v": _A_in["v"],
        "A_shift_k": _A_in["shift_k"],
        "A_ssm_k": _A_in["ssm_k"],
        "A_ssm_D": _A_in["ssm_D"],
        "B_x": _B_in["x"],
        "B_w1": _B_in["w1"],
        "B_b1": _B_in["b1"],
        "B_w2": _B_in["w2"],
        "B_b2": _B_in["b2"],
        "gate_w": _w((lambda *s: torch.randn(*s, dtype=torch.bfloat16) * 0.05)(576) * 16.0),
    }

def reference(A_q, A_k, A_v, A_shift_k, A_ssm_k, A_ssm_D, B_x, B_w1, B_b1, B_w2, B_b2, gate_w):
    def _A_ref(q, k, v, shift_k, ssm_k, ssm_D):
        B, S, D = q.shape
        ks = shift_k.shape[-1]
        k_pad = _pad(k, ((0, 0), (ks - 1, 0), (0, 0)))
        k_shift = torch.zeros_like(k)
        for t in range(ks):
            k_shift = k_shift + k_pad[:, t:t + S, :] * shift_k[:, ks - 1 - t][None, None, :]
        kv = k_shift * v
        L = 2 * S
        kv_pad = _pad(kv, ((0, 0), (0, S), (0, 0)))
        kf_pad = _pad(ssm_k, ((0, 0), (0, S)))
        kv_f = (lambda x, axes=(-2,-1): torch.fft.rfft2(x.float(), dim=axes))(kv_pad[:, None, :, :], axes=(1, 2))
        kf_f = (lambda x, axes=(-2,-1): torch.fft.rfft2(x.float(), dim=axes))(kf_pad[:, None, :], axes=(1, 2))
        kf_f = (lambda x, *d: x.permute(*d))(kf_f, 1, 2, 0)
        y_f = kv_f * kf_f[None, :, :, :]
        y = (lambda x, s, axes=(-2,-1): torch.fft.irfft2(x, s=s, dim=axes).to(torch.bfloat16))(y_f, (1, L), axes=(1, 2))[:, 0, :S, :]
        y = y + kv * ssm_D[None, None, :]
        return q * y

    def _B_ref(x, w1, b1, w2, b2):
        h = torch.einsum("bsd,df->bsf", x, w1) + b1
        h = _gelu(h)
        return torch.einsum("bsf,fd->bsd", h, w2) + b2

    x = A_q
    g = _sigmoid((x * gate_w).sum(-1, keepdims=True))
    a = _A_ref(x, A_k, A_v, A_shift_k, A_ssm_k, A_ssm_D)
    b = _B_ref(x, B_w1, B_b1, B_w2, B_b2)
    return g * a + (1 - g) * b
```

```python
class Asm:
    def __init__(self):
        self.lines = []
    def __call__(self, s):
        for l in s.strip("\n").split("\n"):
            l = l.rstrip()
            self.lines.append(l if l.endswith(":") or l.startswith(".") or l.startswith(";") else "    " + l.strip())
    def label(self, name): self.lines.append(name + ":")
    def comment(self, s): self.lines.append("    ; " + s)
    def text(self): return "\n".join(self.lines) + "\n"

class LStream:
    def __init__(self): self.items = []
    def rd(self, tag, text): self.items.append(('rd', tag, text))
    def lds(self, text): self.items.append(('rd', None, text))
    def use(self, tags, text): self.items.append(('use', list(tags), text))
    def op(self, text): self.items.append(('op', None, text))
    def drain(self): self.items.append(('drain', None, 's_waitcnt lgkmcnt(0)'))
    def emit(self, a, cyclic=True, prev=None):
        pre = (self.items if cyclic else (prev.items if prev is not None else []))
        issued = []
        done = 0
        def step(it, out):
            nonlocal done
            kind, tag, text = it
            if kind == 'rd':
                issued.append(tag)
            elif kind == 'drain':
                done = len(issued)
            elif kind == 'use':
                need = -1
                for t in tag:
                    idx = None
                    for j in range(len(issued) - 1, -1, -1):
                        if issued[j] == t: idx = j; break
                    if idx is None:
                        if not out: continue
                        raise Exception(f"tag {t} never issued")
                    need = max(need, idx)
                if need >= done:
                    n = len(issued) - 1 - need
                    if n > 15: n = 15
                    done = max(done, len(issued) - n)
                    if out: a(f"s_waitcnt lgkmcnt({n})")
            if out: a(text)
        for it in pre: step(it, False)
        if cyclic:
            pass
        for it in self.items: step(it, True)

def kernel_header(a, name):
    a(f".globl {name}\n.p2align 8\n.type {name},@function")
    a.label(name)

def kernel_desc(a, name, vgpr, sgpr=102, accum=None):
    if accum is None: accum = (vgpr + 3) // 4 * 4
    a(f""".section .rodata,"a"
.p2align 6
.amdhsa_kernel {name}
  .amdhsa_next_free_vgpr {vgpr}
  .amdhsa_next_free_sgpr {sgpr}
  .amdhsa_accum_offset {accum}
  .amdhsa_group_segment_fixed_size 0
  .amdhsa_kernarg_size 120
  .amdhsa_user_sgpr_count 2
  .amdhsa_user_sgpr_kernarg_segment_ptr 1
  .amdhsa_system_sgpr_workgroup_id_x 1
.end_amdhsa_kernel
.text""")

def srd(a, s, ptr, size, off=0):
    if off:
        a(f"s_add_u32 s{s}, s{ptr}, {off}\ns_addc_u32 s{s+1}, s{ptr+1}, 0")
    else:
        a(f"s_mov_b32 s{s}, s{ptr}\ns_mov_b32 s{s+1}, s{ptr+1}")
    a(f"s_mov_b32 s{s+2}, {size}\ns_mov_b32 s{s+3}, 0x00020000")
```

```python
from asmlib import *
S, D, F = 2048, 576, 4608
KA = dict(q=0,k=8,v=16,sk=24,ssm=32,Dv=40,x=48,w1=56,b1=64,w2=72,b2=80,gw=88,out=96,dbg=104,ws=112)
SZ_SD = S*D*2
WS_UT   = 0x1000
WS_Y2T  = 0x242000
WS_G    = 0x483000
WS_DUMMY= 0x490000
WS_H    = 0x500000
SZ_H    = 16*144*8192
WS_P    = 0x1700000
SZ_P    = 4*16*4*18*4096
WS_FLAG = 0x2900000
```

```python
from gen_common import *

def gen_prep(a, name="prep_kernel"):
    kernel_header(a, name)
    a(f"""
    s_cmp_ge_u32 s2, 176
    s_cbranch_scc1 {name}_end
    s_load_dwordx4 s[4:7], s[0:1], 0        ; q, k
    s_load_dwordx4 s[8:11], s[0:1], 16      ; v, shift_k
    s_load_dwordx2 s[12:13], s[0:1], 88     ; gate_w
    s_load_dwordx2 s[14:15], s[0:1], 112    ; ws
    v_and_b32 v1, 63, v0                    ; lane
    s_waitcnt lgkmcnt(0)
    s_cmp_ge_u32 s2, 144
    s_cbranch_scc1 {name}_gate
    """)
    a("""
    s_mul_i32 s16, s2, 7282
    s_lshr_b32 s16, s16, 16                 ; sb
    s_mul_i32 s17, s16, 9
    s_sub_u32 s17, s2, s17                  ; db
    """)
    srd(a, 20, 6, SZ_SD)
    srd(a, 24, 8, SZ_SD)
    srd(a, 28, 10, 576*8)
    srd(a, 32, 14, SZ_SD, WS_UT)
    a("""
    v_and_b32 v2, 7, v0                     ; o
    v_lshrrev_b32 v3, 3, v0                 ; rho
    s_lshl_b32 s18, s16, 7                  ; 128*sb
    v_lshlrev_b32 v4, 1, v3
    v_add_u32 v4, s18, v4                   ; s0
    s_movk_i32 s19, 1152
    v_mul_lo_u32 v5, v4, s19                ; s0*1152
    s_lshl_b32 s36, s17, 7
    v_lshl_add_u32 v5, v2, 4, v5            ; + o*16
    v_add_u32 v5, s36, v5
    v_subrev_u32 v6, 3456, v5
    v_subrev_u32 v7, 2304, v5               ; s0-2
    v_subrev_u32 v8, 1152, v5               ; s0-1
    v_add_u32 v9, 1152, v5                  ; s0+1
    buffer_load_dwordx4 v[16:19], v6, s[20:23], 0 offen
    buffer_load_dwordx4 v[20:23], v7, s[20:23], 0 offen
    buffer_load_dwordx4 v[24:27], v8, s[20:23], 0 offen
    buffer_load_dwordx4 v[28:31], v5, s[20:23], 0 offen
    buffer_load_dwordx4 v[32:35], v9, s[20:23], 0 offen
    buffer_load_dwordx4 v[36:39], v5, s[24:27], 0 offen
    buffer_load_dwordx4 v[40:43], v9, s[24:27], 0 offen
    s_lshl_b32 s37, s17, 9
    v_lshlrev_b32 v10, 6, v2
    v_add_u32 v10, s37, v10
    buffer_load_dwordx4 v[44:47], v10, s[28:31], 0 offen
    buffer_load_dwordx4 v[48:51], v10, s[28:31], 0 offen offset:16
    buffer_load_dwordx4 v[52:55], v10, s[28:31], 0 offen offset:32
    buffer_load_dwordx4 v[56:59], v10, s[28:31], 0 offen offset:48
    s_mov_b32 s38, 0xffff0000
    """)
    a("""
    v_and_b32 v11, 1, v3                    ; rho&1
    v_bfe_u32 v12, v3, 2, 1                 ; (rho>>2)&1
    v_lshl_or_b32 v11, v12, 1, v11          ; phi
    v_lshlrev_b32 v11, 1, v11               ; 2*phi
    v_xor_b32 v11, v2, v11                  ; o ^ 2phi
    v_lshlrev_b32 v11, 4, v11
    v_lshl_add_u32 v11, v3, 8, v11
    s_waitcnt vmcnt(0)
    """)
    def unpack(dst, src, hi):
        if hi: a(f"v_and_b32 v{dst}, s38, v{src}")
        else:  a(f"v_lshlrev_b32 v{dst}, 16, v{src}")
    for w in range(4):
        for hi in (0,1):
            e = 2*w+hi
            unpack(60, 44+2*e, 0); unpack(61, 44+2*e, 1); unpack(62, 45+2*e, 0); unpack(63, 45+2*e, 1)
            for r in range(5): unpack(64+r, 16+4*r+w, hi)
            unpack(69, 36+w, hi); unpack(70, 40+w, hi)
            a(f"""
            v_mul_f32 v71, v64, v63
            v_mul_f32 v72, v65, v63
            v_fmac_f32 v71, v65, v62
            v_fmac_f32 v72, v66, v62
            v_fmac_f32 v71, v66, v61
            v_fmac_f32 v72, v67, v61
            v_fmac_f32 v71, v67, v60
            v_fmac_f32 v72, v68, v60
            """)
            a(f"""
            v_cvt_pk_bf16_f32 v73, v71, v72
            v_lshlrev_b32 v71, 16, v73
            v_and_b32 v72, s38, v73
            v_mul_f32 v{74+hi}, v71, v69
            v_mul_f32 v{76+hi}, v72, v70
            """)
        a(f"v_cvt_pk_bf16_f32 v{80+w}, v74, v75\nv_cvt_pk_bf16_f32 v{84+w}, v76, v77")
    a("""
    ds_write_b128 v11, v[80:83]
    ds_write_b128 v11, v[84:87] offset:128
    s_waitcnt lgkmcnt(0)
    s_barrier
    """)
    a("""
    v_lshrrev_b32 v2, 6, v0                 ; wave
    v_lshrrev_b32 v3, 4, v1                 ; g
    v_and_b32 v4, 15, v1                    ; l
    v_lshrrev_b32 v5, 2, v4                 ; r'
    v_and_b32 v6, 3, v4                     ; c4
    v_and_b32 v7, 3, v2                     ; cg
    v_lshrrev_b32 v8, 2, v2                 ; qq
    v_lshrrev_b32 v9, 1, v5                 ; r'>>1
    v_sub_u32 v9, 1, v9                     ; bit1
    v_and_b32 v10, 1, v3
    v_lshl_or_b32 v9, v10, 1, v9            ; phi
    v_lshlrev_b32 v9, 1, v9                 ; 2phi
    v_lshrrev_b32 v10, 1, v6                ; c4>>1
    v_lshl_add_u32 v10, v7, 1, v10          ; chunk
    v_xor_b32 v10, v10, v9                  ; sigma
    v_lshlrev_b32 v10, 4, v10
    v_and_b32 v11, 1, v6
    v_lshl_add_u32 v10, v11, 3, v10         ; + 8*(c4&1)
    v_lshl_add_u32 v11, v8, 3, v3
    v_lshlrev_b32 v12, 3, v11
    v_add_u32 v12, 7, v12
    v_sub_u32 v12, v12, v5                  ; row
    v_lshl_add_u32 v10, v12, 7, v10
    ds_read_b64_tr_b16 v[16:17], v10 offset:0
    """)
    a("""
    v_subrev_u32 v13, 512, v10
    ds_read_b64_tr_b16 v[18:19], v13
    ds_read_b64_tr_b16 v[20:21], v10 offset:4096
    ds_read_b64_tr_b16 v[22:23], v13 offset:4096
    v_lshl_add_u32 v14, v7, 4, v4           ; 16cg+l
    s_lshl_b32 s39, s17, 6
    v_add_u32 v14, s39, v14
    v_lshlrev_b32 v14, 12, v14
    s_lshl_b32 s40, s16, 8
    s_sub_u32 s40, 4080, s40                ; 2*2040 - 256 sb
    v_lshlrev_b32 v15, 4, v11
    v_sub_u32 v15, s40, v15
    v_add_u32 v14, v14, v15
    v_subrev_u32 v15, 64, v14
    s_waitcnt lgkmcnt(2)
    buffer_store_dwordx4 v[16:19], v14, s[32:35], 0 offen
    s_waitcnt lgkmcnt(0)
    buffer_store_dwordx4 v[20:23], v15, s[32:35], 0 offen
    s_waitcnt vmcnt(0)
    s_endpgm
    """)
    a.label(f"{name}_gate")
    srd(a, 20, 4, SZ_SD)
    srd(a, 24, 12, 1152)
    srd(a, 28, 14, 2048*8, WS_G)
    a("""
    s_sub_u32 s16, s2, 144                  ; gi
    s_lshl_b32 s16, s16, 6
    v_lshrrev_b32 v2, 3, v0
    v_add_u32 v2, s16, v2                   ; row
    v_and_b32 v3, 7, v0                     ; o
    s_movk_i32 s19, 1152
    v_mul_lo_u32 v4, v2, s19
    v_lshlrev_b32 v5, 4, v3
    v_add_u32 v4, v4, v5
    """)
    for j in range(9):
        a(f"buffer_load_dwordx4 v[{16+4*j}:{19+4*j}], v4, s[20:23], 0 offen offset:{128*j}")
    for j in range(9):
        a(f"buffer_load_dwordx4 v[{52+4*j}:{55+4*j}], v5, s[24:27], 0 offen offset:{128*j}")
    a("v_mov_b32 v6, 0\nv_mov_b32 v7, 0\ns_waitcnt vmcnt(0)")
    for j in range(36):
        a(f"v_dot2_f32_bf16 v{6+(j&1)}, v{16+j}, v{52+j}, v{6+(j&1)}")
    a("""
    s_nop 2
    v_add_f32 v6, v6, v7
    s_nop 1
    v_add_f32_dpp v6, v6, v6 quad_perm:[1,0,3,2] row_mask:0xf bank_mask:0xf
    s_nop 1
    v_add_f32_dpp v6, v6, v6 quad_perm:[2,3,0,1] row_mask:0xf bank_mask:0xf
    s_nop 1
    v_add_f32_dpp v6, v6, v6 row_half_mirror row_mask:0xf bank_mask:0xf
    ; round logit to bf16
    v_cvt_pk_bf16_f32 v6, v6, v6
    v_lshlrev_b32 v6, 16, v6
    v_mul_f32 v6, 0xbfb8aa3b, v6            ; -log2e * z
    v_exp_f32 v6, v6
    s_nop 0
    v_add_f32 v6, 1.0, v6
    v_rcp_f32 v6, v6
    s_nop 0
    v_cvt_pk_bf16_f32 v6, v6, v6
    v_lshlrev_b32 v6, 16, v6                ; g (bf16 value as f32)
    v_sub_f32 v7, 1.0, v6
    v_cvt_pk_bf16_f32 v7, v7, v7
    v_lshlrev_b32 v7, 16, v7                ; 1-g rounded
    v_lshlrev_b32 v8, 3, v2
    v_cmp_eq_u32 vcc, 0, v3
    s_and_saveexec_b64 s[34:35], vcc
    s_cbranch_execz """+f"{name}_end"+"""
    buffer_store_dwordx2 v[6:7], v8, s[28:31], 0 offen
    s_waitcnt vmcnt(0)
    """)
    a.label(f"{name}_end")
    a("s_endpgm")
    kernel_desc(a, name, 96)
    return (name, 176, 512, 16384)
```

```python
import sys
from gen_common import *
from gen_prep import gen_prep

def build(kernels):
    a = Asm()
    infos = []
    body = Asm()
    for k in kernels:
        infos.append(k(body))
    hdr = open("gated_mix__ssm_conv_h3__dense_activation_gelu__prompt.s.ref").read().split("\n")
    out = []
    for l in hdr:
        if l.startswith("; Override") or l.startswith("; grid=") or l.startswith("; @launch"): break
        out.append(l)
    for (name, grid, block, lds) in infos:
        out.append(f"; @launch kernel={name} grid=({grid},1,1) block=({block},1,1) lds={lds}")
    out.append('.amdgcn_target "amdgcn-amd-amdhsa--gfx950"')
    out.append(".text")
    return "\n".join(out) + "\n" + body.text()

if __name__ == "__main__":
    import importlib
    names = sys.argv[2:]
    ks = []
    for n in names:
        mod, fn = n.split(":")
        ks.append(getattr(importlib.import_module(mod), fn))
    open(sys.argv[1], "w").write(build(ks))
```

```python
import sys
from gen_common import *
from gen_prep import gen_prep

def build(kernels):
    a = Asm()
    infos = []
    body = Asm()
    for k in kernels:
        infos.append(k(body))
    hdr = open("gated_mix__ssm_conv_h3__dense_activation_gelu__prompt.s.ref").read().split("\n")
    out = []
    for l in hdr:
        if l.startswith("; Override") or l.startswith("; grid=") or l.startswith("; @launch"): break
        out.append(l)
    if len(infos) == 1 and infos[0][0].startswith("gated_mix"):
        (name, grid, block, lds) = infos[0]
        out.append(f"; @launch grid=({grid},1,1) block=({block},1,1) lds={lds}")
    else:
        for (name, grid, block, lds) in infos:
            out.append(f"; @launch kernel={name} grid=({grid},1,1) block=({block},1,1) lds={lds}")
    out.append('.amdgcn_target "amdgcn-amd-amdhsa--gfx950"')
    out.append(".text")
    return "\n".join(out) + "\n" + body.text()

if __name__ == "__main__":
    import importlib
    names = sys.argv[2:]
    ks = []
    for n in names:
        mod, fn = n.split(":")
        ks.append(getattr(importlib.import_module(mod), fn))
    open(sys.argv[1], "w").write(build(ks))
```
